```python
import torch

def _softmax(x, axis=-1):
    return torch.softmax(x, dim=axis)
def _gelu(x):
    return torch.nn.functional.gelu(x, approximate="tanh")
def _silu(x):
    return torch.nn.functional.silu(x)
def _sigmoid(x):
    return torch.sigmoid(x)
def _layernorm(x, axis=-1, eps=1e-5):
    m = x.mean(dim=axis, keepdim=True)
    v = x.var(dim=axis, keepdim=True, unbiased=False)
    return (x - m) / torch.sqrt(v + eps)
def _scatter_add(tgt, idx, src, axis=0):
    return tgt.clone().index_add_(axis, idx, src)
def _segment_sum(src, seg, n):
    out = torch.zeros((n,) + src.shape[1:], dtype=src.dtype)
    return out.index_add_(0, seg, src)
def _pad(x, pw):
    flat = tuple(v for pair in reversed(pw) for v in pair)
    return torch.nn.functional.pad(x, flat)

kernel_name = 'parallel_sum__softmax_full_mha__dense_activation_squared_relu__prompt'

def setup_inputs():

    _w = (lambda a: (lambda t: t.to(torch.bfloat16) if t.is_floating_point() else t)(torch.as_tensor(a)))
    def _A_setup():
        B, S, D = 1, 2048, 512
        return {
            "x": _w((lambda *s: torch.randn(*s, dtype=torch.bfloat16) * 0.05)(B, S, D)),
            "wqkv": _w((lambda *s: torch.randn(*s, dtype=torch.bfloat16) * 0.2)(D, 3 * D)),
            "wo": _w((lambda *s: torch.randn(*s, dtype=torch.bfloat16) * 0.1)(D, D)),
        }
    _A_in = _A_setup()

    def _B_setup():
        B, S, D, F = 1, 2048, 512, 1376
        return {
            "x": _w((lambda *s: torch.randn(*s, dtype=torch.bfloat16) * 0.05)(B, S, D)),
            "w1": _w((lambda *s: torch.randn(*s, dtype=torch.bfloat16) * 0.1)(D, F)),
            "b1": _w((lambda *s: torch.randn(*s, dtype=torch.bfloat16) * 0.8)(F)),
            "w2": _w((lambda *s: torch.randn(*s, dtype=torch.bfloat16) * 0.1)(F, D)),
            "b2": _w((lambda *s: torch.randn(*s, dtype=torch.bfloat16) * 12.8)(D)),
        }
    _B_in = _B_setup()

    return {
        "A_x": _A_in["x"],
        "A_wqkv": _A_in["wqkv"],
        "A_wo": _A_in["wo"],
        "B_x": _B_in["x"],
        "B_w1": _B_in["w1"],
        "B_b1": _B_in["b1"],
        "B_w2": _B_in["w2"],
        "B_b2": _B_in["b2"],
    }

def reference(A_x, A_wqkv, A_wo, B_x, B_w1, B_b1, B_w2, B_b2):
    def _A_ref(x, wqkv, wo):
        B, S, D = x.shape
        H = 32; Dh = D // H
        qkv = (lambda x, *d: x.permute(*d))((x @ wqkv).reshape(B, S, 3, H, Dh), 2, 0, 3, 1, 4)
        q, k, v = qkv[0], qkv[1], qkv[2]
        scale = Dh ** -0.5
        scores = torch.einsum("bhqd,bhkd->bhqk", q, k) * scale
        p = _softmax(scores, axis=-1)
        o = torch.einsum("bhqk,bhkd->bhqd", p, v)
        return (lambda x, *d: x.permute(*d))(o, 0, 2, 1, 3).reshape(B, S, D) @ wo

    def _B_ref(x, w1, b1, w2, b2):
        h = torch.einsum("bsd,df->bsf", x, w1) + b1
        zero = torch.zeros_like(h)
        r = torch.where(h > zero, h, zero)
        h = r * r
        out = torch.einsum("bsf,fd->bsd", h, w2) + b2
        return out

    x = A_x
    xn = _layernorm(x, axis=-1)
    return x + _A_ref(xn, A_wqkv, A_wo) + _B_ref(xn, B_w1, B_b1, B_w2, B_b2)
```

```python
import re

_REG = re.compile(r"^(-|\|)?(abs\()?([vas])(?:\[(\d+):(\d+)\]|(\d+))\)?\|?$")


def regs_of(op):
    op = op.strip()
    if op in ("vcc",):
        return [("s", "vcc")]
    if op in ("exec",):
        return [("s", "exec")]
    if op == "m0":
        return [("s", "m0")]
    o = op.lstrip("-")
    if o.startswith("|"):
        o = o.strip("|")
    if o.startswith("abs("):
        o = o[4:-1]
    m = re.match(r"^([vas])\[(\d+):(\d+)\]$", o)
    if m:
        return [(m.group(1), i) for i in range(int(m.group(2)), int(m.group(3)) + 1)]
    m = re.match(r"^([vas])(\d+)$", o)
    if m:
        return [(m.group(1), int(m.group(2)))]
    return []


TRANS = ("v_exp_f32", "v_log_f32", "v_rcp_f32", "v_rsq_f32", "v_sqrt_f32")


class Ins:
    def __init__(self, text):
        self.text = text
        t = text.split(";")[0].strip()
        self.is_label = t.endswith(":")
        self.mn = t.split()[0] if t else ""
        rest = t[len(self.mn):].strip()
        ops = [x.strip() for x in rest.split(",")] if rest else []
        self.mods = []
        if ops:
            parts = ops[-1].split()
        cut = re.search(r"\s(op_sel|op_sel_hi|neg_lo|neg_hi|offset|offen|offset0|offset1|sc0|sc1|nt|lds|cbsz|abid|blgp|clamp|dst_sel|row_|quad_perm|glc)\b", rest)
        if cut:
            self.mods = rest[cut.start():].split()
            rest = rest[:cut.start()]
        ops = [x.strip() for x in rest.split(",")] if rest.strip() else []
        self.ops = ops
        mn = self.mn
        self.cls = "other"
        R, W = [], []
        rs = [regs_of(o) for o in ops]
        flat = lambda l: [x for y in l for x in y]
        if self.is_label or mn.startswith("."):
            self.cls = "label"
        elif mn.startswith("v_mfma"):
            self.cls = "mfma"
            W = rs[0]; self.A = rs[1]; self.B = rs[2]; self.C = rs[3]
            R = flat(rs[1:])
        elif mn.startswith("v_smfmac"):
            self.cls = "mfma"
            W = rs[0]; self.A = rs[1]; self.B = rs[2] + rs[3]; self.C = rs[0]
            R = flat(rs)
        elif mn.startswith("v_permlane"):
            self.cls = "valu"; W = flat(rs); R = flat(rs)
        elif mn.startswith("v_cmp"):
            self.cls = "valu"; W = rs[0]; R = flat(rs[1:])
        elif mn.startswith("v_"):
            self.cls = "valu"; W = rs[0]; R = flat(rs[1:])
            if mn.startswith(("v_fmac", "v_dot2c")):
                R += rs[0]
            if mn.startswith(("v_add_co", "v_addc_co", "v_sub_co")):
                W = rs[0] + rs[1]; R = flat(rs[2:])
        elif mn.startswith("ds_read"):
            self.cls = "ds"; W = rs[0]; R = flat(rs[1:])
        elif mn.startswith("ds_write"):
            self.cls = "ds"; R = flat(rs)
        elif mn.startswith(("buffer_load", "global_load")):
            self.cls = "vmem"
            if "lds" in self.mods:
                R = flat(rs) + [("s", "m0")]
            else:
                W = rs[0]; R = flat(rs[1:])
        elif mn.startswith(("buffer_store", "global_store", "buffer_atomic")):
            self.cls = "vmem"; R = flat(rs)
            self.store_data = rs[0] if mn.startswith("buffer") else rs[1]
        elif mn.startswith(("s_load", "s_memtime", "s_memrealtime")):
            self.cls = "smem"; W = rs[0]; R = flat(rs[1:])
        elif mn in ("s_waitcnt", "s_nop", "s_barrier", "s_sleep", "s_endpgm", "s_setprio"):
            self.cls = "sctl"
        elif mn.startswith(("s_cbranch", "s_branch")):
            self.cls = "branch"
        elif mn.startswith(("s_cmp", "s_bitcmp")):
            self.cls = "salu"; R = flat(rs)
        elif mn.startswith("s_"):
            self.cls = "salu"; W = rs[0]; R = flat(rs[1:])
            if "saveexec" in mn:
                W = W + [("s", "exec")]
        self.R = set(R); self.W = set(W)
        self.passes = 0
        if self.cls == "mfma":
            self.passes = 8 if "32x32" in mn else 4
        self.states = 1
        if mn == "s_nop":
            self.states = int(ops[0], 0) + 1
        if self.cls == "label":
            self.states = 0


def need_states(p, c):
    n = 0
    vW = {r for r in p.W if r[0] in "va"}
    sW = {r for r in p.W if r[0] == "s"}
    if p.cls == "valu":
        if c.cls == "mfma" and vW & c.R:
            n = max(n, 3 if p.mn.startswith("v_dot") else 2)
        if c.mn.startswith("v_permlane") and vW & c.R:
            n = max(n, 2)
        if c.mn.startswith(("v_readfirstlane", "v_readlane")) and vW & c.R:
            n = max(n, 1)
        if p.mn.startswith(TRANS) and c.cls == "valu" and not c.mn.startswith(TRANS) and vW & c.R:
            n = max(n, 1)
        if p.mn.startswith("v_dot"):
            if c.mn == p.mn:
                ab = set(regs_of(c.ops[1]) + regs_of(c.ops[2]))
                if vW & ab:
                    n = max(n, 3)
            elif vW & (c.R | c.W):
                n = max(n, 3)
        if sW:
            if c.cls == "valu" and sW & c.R:
                n = max(n, 2)
            if c.cls == "vmem" and sW & c.R:
                n = max(n, 5)
            if c.cls in ("salu",) and sW & c.R:
                n = max(n, 1)
        if any("dpp" in m or m.startswith(("row_", "quad_perm")) for m in c.mods) and vW & c.R:
            n = max(n, 2)
        if any(m.startswith(("op_sel", "dst_sel")) for m in p.mods) and c.cls == "valu" and vW & (c.R | c.W) and not p.mn.startswith("v_pk"):
            n = max(n, 1)
    if p.cls == "mfma":
        D = p.W
        big = {4: 8, 8: 12}[p.passes]
        if c.cls == "mfma":
            if D & (set(c.A) | set(c.B)):
                n = max(n, big)
            if D & set(c.C):
                if not (set(c.C) == D and c.passes == p.passes):
                    n = max(n, {4: 6, 8: 10}[p.passes])
        elif c.cls in ("valu", "vmem", "ds") and D & (c.R | c.W):
            n = max(n, big)
        if c.cls == "valu" and set(p.C) & c.W:
            n = max(n, {4: 3, 8: 7}[p.passes])
    if p.cls == "salu" and ("s", "m0") in p.W and c.cls == "vmem" and ("s", "m0") in c.R:
        n = max(n, 1)
    if p.cls == "vmem" and hasattr(p, "store_data") and len(p.store_data) >= 3:
        if set(p.store_data) & c.W:
            n = max(n, 2)
    return n


class Asm:
    def __init__(self):
        self.ins = []
        self.vm = []
        self.lg = []
        self.smem_pending = set()
        self.nops_added = 0
        self.auto = True

    def _push(self, text):
        i = Ins(text)
        if i.cls not in ("label",):
            dist = 0
            pad = 0
            for p in reversed(self.ins[-40:]):
                if p.cls == "label" and p.is_label:
                    continue
                need = need_states(p, i)
                if need > dist:
                    pad = max(pad, need - dist)
                dist += p.states
                if dist >= 20:
                    break
            while pad > 0:
                k = min(pad, 16)
                self.ins.append(Ins(f"s_nop {k-1}"))
                self.nops_added += 1
                pad -= k
        self.ins.append(i)
        return i

    def _trim_vm(self, n):
        if n == 0:
            self.vm = []
            return
        c = 0
        for k in range(len(self.vm) - 1, -1, -1):
            if self.vm[k]["certain"]:
                c += 1
                if c == n:
                    self.vm = self.vm[k:]
                    return

    def snapshot(self):
        import copy
        return copy.deepcopy((self.vm, self.lg, self.smem_pending))

    def restore(self, st):
        import copy
        self.vm, self.lg, self.smem_pending = copy.deepcopy(st)

    def _wait(self, vm=None, lg=None):
        parts = []
        if vm is not None:
            assert vm <= 63
            parts.append(f"vmcnt({vm})")
            self._trim_vm(vm)
        if lg is not None:
            assert lg <= 15
            parts.append(f"lgkmcnt({lg})")
            self.lg = self.lg[len(self.lg) - lg:] if lg else []
            if lg == 0:
                self.smem_pending = set()
        self._push("s_waitcnt " + " ".join(parts))

    def e(self, text, tag=None, certain=True):
        for line in text.split("\n"):
            line = line.strip()
            if not line or line.startswith(";"):
                continue
            self._e1(line, tag, certain)

    def _e1(self, text, tag, certain):
        i = Ins(text)
        if i.mn == "s_waitcnt":
            m = re.search(r"vmcnt\((\d+)\)", text); vm = int(m.group(1)) if m else None
            m = re.search(r"lgkmcnt\((\d+)\)", text); lg = int(m.group(1)) if m else None
            if vm is not None:
                self._trim_vm(vm)
            if lg is not None and lg < len(self.lg):
                self.lg = self.lg[len(self.lg) - lg:] if lg else []
            if lg == 0:
                self.smem_pending = set()
            self._push(text)
            return
        touch = i.R | i.W
        if self.auto and touch:
            vm = lg = None
            for k, o in enumerate(self.vm):
                if o["regs"] & touch:
                    vm = sum(1 for x in self.vm[k + 1:] if x["certain"])
                    vmk = k
            for k, o in enumerate(self.lg):
                if o["regs"] & touch:
                    lg = len(self.lg) - 1 - k
            if self.smem_pending & touch:
                lg = 0
            if lg is not None and self.smem_pending:
                lg = 0
            if vm is not None or lg is not None:
                parts = []
                if vm is not None:
                    vm = min(vm, 63)
                    parts.append(f"vmcnt({vm})"); self.vm = self.vm[vmk + 1:]
                if lg is not None:
                    lg = min(lg, 15)
                    parts.append(f"lgkmcnt({lg})")
                    self.lg = self.lg[len(self.lg) - lg:] if lg else []
                    if lg == 0:
                        self.smem_pending = set()
                self._push("s_waitcnt " + " ".join(parts))
        if i.cls == "ds" and len(self.lg) >= 15:
            self._wait(lg=0 if self.smem_pending else 14)
        self._push(text)
        if i.cls == "vmem":
            self.vm.append(dict(tag=tag, regs=set(i.W), certain=certain))
            assert len(self.vm) <= 63, "vmcnt overflow"
        elif i.cls == "ds":
            self.lg.append(dict(tag=tag, regs=set(i.W)))
        elif i.cls == "smem":
            self.smem_pending |= i.W

    def wait_vm_tag(self, tag):
        last = None
        for k, o in enumerate(self.vm):
            if o["tag"] == tag:
                last = k
        if last is None:
            return
        n = sum(1 for x in self.vm[last + 1:] if x["certain"])
        self.vm = self.vm[last + 1:]
        self._push(f"s_waitcnt vmcnt({n})")

    def wait_lg_tag(self, tag):
        last = None
        for k, o in enumerate(self.lg):
            if o["tag"] == tag:
                last = k
        if last is None:
            return
        n = len(self.lg) - 1 - last
        if self.smem_pending:
            n = 0
        self._wait(lg=min(n, 15))

    def wait_lg0(self):
        self._wait(lg=0)

    def wait_vm0(self):
        self._wait(vm=0)

    def label(self, name):
        self.ins.append(Ins(name + ":"))

    def text(self):
        out = []
        for i in self.ins:
            out.append(i.text if i.cls == "label" else "    " + i.text)
        return "\n".join(out)
```

```python
import math, struct, sys
from collections import defaultdict
from asmfw import Asm

NAME = "parallel_sum__softmax_full_mha__dense_activation_squared_relu__prompt"

DEF = dict(NRB=4, ROT=1, STAMP=0, BIAS=72.0, R=6, FORCE_FB=0, PF=1,
           FLAG_STEP=12, POLL_STEP=14, OLOAD_KS=14, LA2=2)


def f2u(x):
    return struct.unpack("<I", struct.pack("<f", x))[0]


WS_KV = 0
WS_O = 4 << 20
WS_KVF = 6 << 20
WS_HF = WS_KVF + (1 << 16)
WS_ST = 7 << 20
WS_SZ = 8 << 20
WS_H = 8 << 20
H_SZ = 86 * 65536
FS = 32
SPIN = 400000

sW, sCG, sRB, sRT, sC0, sRT64, sCT64 = "s3", "s4", "s5", "s6", "s7", "s8", "s9"
T0, T1, T2, T3 = "s10", "s11", "s12", "s13"
sXB, sWB = "s14", "s15"
sQB, sFB = "s38", "s39"
SX, SWQ, SW1, SW2, SWO, SWS, SH, SOUT, SDBG, SB1, SB2 = [f"s[{40+4*i}:{43+4*i}]" for i in range(11)]
sA, sB, sC, sD = "s84", "s85", "s86", "s87"
sMASK = "s[88:89]"
sHI = "s[90:91]"
sONES = "s92"
sFT0 = "s93"
sKV = "s94"
sFBK = "s95"
sLDSW = "s96"
sCNT = "s97"
sTS = "s[98:99]"
sE, sF = "s100", "s101"

L_X = 0
L_WKV = 49152
L_S2 = 73728
L_CS = 139264
L_QX = 145408
LDS_BYTES = 163840


def v(i, n=1):
    return f"v{i}" if n == 1 else f"v[{i}:{i+n-1}]"


def a(i, n=1):
    return f"a{i}" if n == 1 else f"a[{i}:{i+n-1}]"


class Gen:
    def __init__(self, **kw):
        self.p = dict(DEF); self.p.update(kw)
        self.A = Asm()
        self.late = []
        self.nstamp = 0

    def e(self, t, **k):
        self.A.e(t, **k)

    def stamp(self):
        if not self.p["STAMP"]:
            return
        self.e(f"s_memtime {sTS}")
        self.A.wait_lg0()
        self.e(f"v_writelane_b32 v2, s98, {self.nstamp}")
        self.nstamp += 1

    def srd(self, srd, ptr, nbytes, add=0):
        b = int(srd[2:srd.index(":")])
        if add:
            self.e(f"s_add_u32 s{b}, s{ptr}, {add}\ns_addc_u32 s{b+1}, s{ptr+1}, 0")
        else:
            self.e(f"s_mov_b32 s{b}, s{ptr}\ns_mov_b32 s{b+1}, s{ptr+1}")
        self.e(f"s_mov_b32 s{b+2}, {nbytes}\ns_mov_b32 s{b+3}, 0x00020000")

    def poll_check(self, name, vf, load, expect=1):
        self.e(f"v_cmp_ne_u32 vcc, {expect}, {vf}")
        self.e(f"s_cbranch_vccnz L_{name}_retry")
        self.A.label(f"L_{name}_ok")
        self.late.append(f"""L_{name}_retry:
    s_mov_b32 {sCNT}, {SPIN}
L_{name}_loop:
    s_sleep 4
    {load}
    s_waitcnt vmcnt(0)
    v_cmp_ne_u32 vcc, {expect}, {vf}
    s_sub_u32 {sCNT}, {sCNT}, 1
    s_cbranch_vccz L_{name}_ok
    s_cmp_lg_u32 {sCNT}, 0
    s_cbranch_scc1 L_{name}_loop
    s_branch L_{name}_ok""")

    def chunk(self, step, stage):
        e = self.e
        e(f"s_add_u32 {T0}, {sC0}, {step & 7}\ns_and_b32 {T0}, {T0}, 7")
        o1, o2 = (sA, sB) if step % 2 == 0 else (sC, sD)
        if stage == 1:
            e(f"s_lshl_b32 {T1}, {T0}, 7\ns_add_u32 {o1}, {sXB}, {T1}")
            e(f"s_mul_i32 {T1}, {T0}, {64*3072}\ns_add_u32 {o2}, {sWB}, {T1}")
        else:
            e(f"s_mul_i32 {T1}, {T0}, {64*3072}\ns_add_u32 {o1}, {sQB}, {T1}")
            e(f"s_mul_i32 {T1}, {T0}, {64*2752}\ns_add_u32 {o2}, {sFB}, {T1}")

    def dma_x(self, step):
        o1 = sA if step % 2 == 0 else sC
        out = [f"s_add_u32 m0, {sE}, {L_X + (step % 3) * 16384}"]
        out += [f"buffer_load_dwordx4 v{3+i}, {SX}, {o1} offen offset:{i*1024} lds" for i in range(4)]
        return out

    def dma_w(self, step):
        o2 = sB if step % 2 == 0 else sD
        out = [f"s_add_u32 m0, {sF}, {L_WKV + (step % 3) * 8192}"]
        out += [f"buffer_load_dwordx4 v{7+i}, {SWQ}, {o2} offen offset:{i*1024} lds" for i in range(2)]
        return out

    def dma_s2(self, step):
        o1, o2 = (sA, sB) if step % 2 == 0 else (sC, sD)
        base = L_S2 + (step % 4) * 16384
        out = [f"s_add_u32 m0, {sE}, {base}", f"buffer_load_dwordx4 v9, {SWQ}, {o1} offen lds"]
        for t in range(3):
            out += [f"s_add_u32 m0, {sE}, {base + (t+1)*1024 - t*64}",
                    f"buffer_load_dwordx4 v10, {SW1}, {o2} offen offset:{t*64} lds"]
        return out

    def prologue(self):
        e = self.e; p = self.p
        NRB = p["NRB"]; NCG = 32 // NRB; nx = 16 // NRB
        lr = int(math.log2(NRB)); lx = int(math.log2(nx)); lc = int(math.log2(NCG))
        e("s_cmp_ge_u32 s2, 256\ns_cbranch_scc1 L_end")
        e("s_load_dwordx16 s[16:31], s[0:1], 0\ns_load_dwordx4 s[32:35], s[0:1], 64\ns_load_dwordx2 s[36:37], s[0:1], 80")
        e("v_lshrrev_b32 v1, 6, v0\nv_and_b32 v0, 63, v0")
        e(f"v_readfirstlane_b32 {sW}, v1\nv_lshlrev_b32 v1, 4, v0")
        e(f"s_and_b32 {T2}, s2, 7\ns_lshr_b32 {T3}, s2, 3")
        if p["PF"]:
            e(f"s_lshl_b32 {T0}, {sW}, 5\ns_add_u32 {T0}, {T0}, {T3}")
            e(f"s_cmp_ge_u32 {T0}, (L_codeend-{NAME}_kernel)/1024\ns_cbranch_scc1 L_nopf")
            e(f"s_getpc_b64 s[84:85]")
            self.A.label("L_pc")
            e(f"s_sub_u32 s84, s84, L_pc-{NAME}_kernel\ns_subb_u32 s85, s85, 0")
            e(f"s_lshl_b32 {T0}, {T0}, 10\nv_add_u32 v60, {T0}, v1")
            e("global_load_dwordx4 v[60:63], v60, s[84:85]", certain=False)
            self.A.label("L_nopf")
        if p["STAMP"]:
            e("v_mov_b32 v2, 0")
        e(f"""s_and_b32 {T0}, {T3}, {NRB-1}
s_lshr_b32 {T1}, {T3}, {lr}
s_and_b32 {sRB}, {T2}, {nx-1}
s_lshl_b32 {sRB}, {sRB}, {lr}
s_add_u32 {sRB}, {sRB}, {T0}
s_lshr_b32 {sCG}, {T2}, {lx}
s_lshl_b32 {sCG}, {sCG}, {lc}
s_add_u32 {sCG}, {sCG}, {T1}""")
        if p["ROT"]:
            e(f"s_mul_i32 {T0}, {T0}, {max(8//NRB,1)}\ns_mul_i32 {T1}, {T1}, {max(8//NCG,1)}\ns_add_u32 {sC0}, {T0}, {T1}")
        else:
            e(f"s_mov_b32 {sC0}, 0")
        e(f"""s_lshl_b32 {sRT64}, {T2}, 2
s_lshr_b32 {T0}, {T3}, 3
s_add_u32 {sRT64}, {sRT64}, {T0}
s_and_b32 {sCT64}, {T3}, 7
s_lshl_b32 {sRT}, {sRB}, 2
s_add_u32 {sRT}, {sRT}, {sW}
s_lshl_b32 {sXB}, {sRT}, 15
s_lshr_b32 {T0}, {sCG}, 1
s_lshl_b32 {T0}, {T0}, 7
s_and_b32 {T1}, {sCG}, 1
s_add_u32 {T1}, {T1}, 1
s_lshl_b32 {T1}, {T1}, 10
s_add_u32 {T0}, {T0}, {T1}
s_mul_i32 {T1}, {sW}, {16*3072}
s_add_u32 {sWB}, {T0}, {T1}
s_lshl_b32 {T0}, {sCG}, 6
s_add_u32 {sQB}, {T0}, {T1}
s_lshl_b32 {sE}, {sW}, 12
s_lshl_b32 {sF}, {sW}, 11""")
        e("""v_lshrrev_b32 v20, 3, v0
v_and_b32 v21, 7, v0
v_lshrrev_b32 v22, 4, v0
v_xor_b32 v23, v21, v22
v_lshlrev_b32 v23, 4, v23
v_lshl_add_u32 v3, v20, 10, v23
v_xor_b32 v4, 64, v3
v_add_u32 v4, 7168, v4
v_add_u32 v5, 14336, v3
v_add_u32 v6, 14336, v4
v_and_b32 v22, 1, v22
v_lshlrev_b32 v22, 2, v22
v_xor_b32 v23, v21, v22
v_lshlrev_b32 v23, 4, v23
v_mul_u32_u24 v7, 3072, v20
v_add_u32 v7, v7, v23""")
        e(f"v_add_u32 v8, {8*3072-1024}, v7")
        self.chunk(0, 1); self.chunk(1, 1)
        self.srd(SX, 16, 2048 * 1024)
        self.srd(SWQ, 18, 512 * 3072)
        self.srd(SWS, 36, WS_SZ)
        self.stamp()
        e(f"s_lshl_b32 {T0}, {sW}, 8\ns_add_u32 {T0}, {T0}, s2\ns_cmp_ge_u32 {T0}, 16\ns_cbranch_scc1 L_norst")
        e(f"""v_mov_b32 v24, 0
v_lshlrev_b32 v25, {int(math.log2(FS))}, v0
s_mul_i32 {T0}, s2, {64*FS}
s_add_u32 {T0}, {T0}, {WS_HF}
v_and_b32 v26, 15, v0
v_lshlrev_b32 v26, {int(math.log2(FS))}, v26
s_mul_i32 {T1}, s2, {16*FS}
s_add_u32 {T1}, {T1}, {WS_KVF}""")
        e(f"buffer_store_dword v24, v25, {SWS}, {T0} offen sc1", certain=False)
        e(f"buffer_store_dword v24, v26, {SWS}, {T1} offen sc1", certain=False)
        self.A.label("L_norst")
        for l in self.dma_x(0) + self.dma_w(0):
            e(l, tag=("c", 0))
        for l in self.dma_w(1):
            e(l, tag=("c", 1))
        self.srd(SDBG, 34, 256)
        e(f"s_lshl_b32 {T0}, {sW}, 8\ns_add_u32 {T0}, {T0}, s2\ns_cmp_ge_u32 {T0}, 16\ns_cbranch_scc1 L_nogo")
        st = self.A.snapshot()
        e(f"v_mov_b32 v24, 1\nv_mov_b32 v25, 0\ns_lshl_b32 {T0}, s2, 4\ns_mov_b64 exec, 1\ns_waitcnt vmcnt(8)")
        self.A.restore(st)
        e(f"buffer_store_dword v24, v25, {SDBG}, {T0} offen sc1", certain=False)
        e("s_mov_b64 exec, -1")
        self.A.label("L_nogo")
        for l in self.dma_x(1):
            e(l, tag=("c", 1))
        self.srd(SW1, 24, 512 * 2752)
        self.srd(SW2, 28, 1376 * 1024)
        self.srd(SWO, 20, 512 * 1024)
        self.srd(SH, 36, H_SZ, add=WS_H)
        self.srd(SOUT, 32, 2048 * 1024)
        self.srd(SB1, 26, 2752)
        self.srd(SB2, 30, 1024)
        e(f"""s_mov_b32 s88, 0x0000ffff
s_mov_b32 s89, 0x0000ffff
s_mov_b32 s90, 0
s_mov_b32 s91, -1
s_mov_b32 {sONES}, 0x3f803f80
s_mov_b32 {sFBK}, 0
s_mul_i32 {sFT0}, {sCG}, 3
s_lshl_b32 {T0}, {sCG}, 1
s_add_u32 {T0}, {T0}, 11
s_min_u32 {sFT0}, {sFT0}, {T0}
s_mul_i32 {T1}, {sW}, {16*2752}
s_lshl_b32 {T0}, {sFT0}, 6
s_add_u32 {sFB}, {T0}, {T1}
s_mul_i32 {sLDSW}, {sW}, 40960""")
        e("""v_lshrrev_b32 v20, 2, v0
v_and_b32 v21, 3, v0
v_lshlrev_b32 v22, 4, v21
v_mul_u32_u24 v9, 3072, v20
v_add_u32 v9, v9, v22
v_mul_u32_u24 v10, 2752, v20
v_add_u32 v10, v10, v22""")
        e(f"""v_and_b32 v20, 31, v0
v_lshrrev_b32 v22, 5, v0
v_bfe_u32 v23, v0, 1, 3
v_xor_b32 v23, v23, v22
v_lshlrev_b32 v23, 4, v23
v_lshl_add_u32 v11, v20, 7, v23
v_add_u32 v11, {sE}, v11
v_xor_b32 v12, 32, v11
v_xor_b32 v13, 64, v11
v_xor_b32 v14, 96, v11""")
        e(f"""v_bfe_u32 v23, v0, 2, 2
v_lshl_add_u32 v24, v22, 3, v23
v_bfe_u32 v25, v0, 4, 1
v_lshlrev_b32 v25, 5, v25
v_lshl_add_u32 v25, v21, 3, v25
v_lshl_add_u32 v19, v24, 6, v25
v_add_u32 v19, {L_S2}, v19
v_add_u32 v28, {sE}, v19
v_lshl_add_u32 v15, v24, 7, v25
v_bfe_u32 v26, v0, 3, 1
v_lshl_add_u32 v15, v26, 6, v15
v_add_u32 v15, {L_WKV}, v15
v_xor_b32 v16, 64, v15
v_add_u32 v17, {sF}, v15
v_add_u32 v18, {sF}, v16""")
        e(f"v_lshlrev_b32 v20, 1, v20\ns_lshl_b32 {T0}, {sFT0}, 6")
        for t in range(3):
            e(f"buffer_load_ushort v{29+t}, v20, {SB1}, {T0} offen offset:{t*64}")
        e("v_mov_b32 v20, 0\nv_mov_b32 v21, 0\nv_mov_b32 v24, 0\nv_mov_b32 v25, 0\nv_mov_b32 v26, 0\nv_mov_b32 v27, 0")
        e(f"v_mov_b32 v22, {sONES}")
        for s in range(self.p["R"]):
            for j in range(8):
                e(f"v_accvgpr_write_b32 a{12*s+4+j}, v22")

    WB = 72
    XF = 128
    CT = 32

    def kv_reads(self, n):
        i, s = n >> 2, n & 3
        out = [f"ds_read_b128 {v(self.XF+4*n,4)}, v{11+s} offset:{(i%3)*16384}"]
        wb = self.WB + 16 * (n & 1)
        for t in range(2):
            for u in range(2):
                out.append(f"ds_read_b64_tr_b16 {a(wb+4*t+2*u,2)}, v{15+t} offset:{(i%3)*8192+s*2048+u*512}")
        return out

    def next_dma(self, j):
        if j > 15:
            return []
        return [("chunk", j)] + [(l, j) for l in (self.dma_x(j) + self.dma_w(j) if j < 8 else self.dma_s2(j))]

    def emit_side(self, item):
        if isinstance(item, tuple):
            if item[0] == "chunk":
                self.chunk(item[1], 1 if item[1] < 8 else 2)
            else:
                self.e(item[0], tag=("c", item[1]))
        elif callable(item):
            item()
        else:
            self.e(item)

    def kv_stage(self, isv):
        e = self.e; A = self.A
        ACC = 64
        A.wait_vm_tag(("c", 0)); e("s_barrier")
        self.stamp()
        for l in self.kv_reads(0):
            e(l)
        pend = self.next_dma(2)
        for n in range(32):
            i, s = n >> 2, n & 3
            if s == 0:
                for t in range(2):
                    for u in range(2):
                        e(f"ds_read_b64_tr_b16 {v(self.CT+4*t+2*u,2)}, v{17+t} offset:{(i%3)*8192+u*512}")
            if n + 1 < 32:
                if s == 3:
                    while pend:
                        self.emit_side(pend.pop(0))
                    A.wait_lg0()
                    A.wait_vm_tag(("c", i + 1)); e("s_barrier")
                    pend = self.next_dma(i + 3)
                for l in self.kv_reads(n + 1):
                    e(l)
            wb = self.WB + 16 * (n & 1)
            x = v(self.XF + 4 * n, 4)
            side = []
            for j in range(4):
                side.append(f"v_dot2_f32_bf16 v20, v{self.XF+4*n+j}, {sONES}, v20")
                side.append(f"v_dot2_f32_bf16 v21, v{self.XF+4*n+j}, v{self.XF+4*n+j}, v21")
            if s == 1:
                for j in range(4):
                    for t in range(2):
                        side.append(f"v_dot2_f32_bf16 v{24+t}, v{self.CT+4*t+j}, {sONES}, v{24+t}")
            for t in range(2):
                c = "0" if n == 0 else v(ACC + 16 * t, 16)
                w = a(wb + 4 * t, 4)
                ops = f"{x}, {w}" if isv else f"{w}, {x}"
                e(f"v_mfma_f32_32x32x16_bf16 {v(ACC+16*t,16)}, {ops}, {c}")
                for _ in range(2):
                    if pend:
                        self.emit_side(pend.pop(0))
                h = len(side) // 2 if t == 0 else len(side)
                for l in side[:h]:
                    e(l)
                side = side[h:]
            if n == 29:
                self.cs_write(2)
        while pend:
            self.emit_side(pend.pop(0))
        self.stamp()
        self.stats()
        A.wait_lg0(); e("s_barrier")
        self.cs_read(2, bias=False)
        for t in range(2):
            ops = f"v[48:51], {v(32+4*t,4)}" if isv else f"{v(32+4*t,4)}, v[48:51]"
            e(f"v_mfma_f32_32x32x16_bf16 {v(ACC+16*t,16)}, {ops}, {v(ACC+16*t,16)}")
        e(f"s_lshr_b32 {T0}, {sCG}, 1\ns_lshl_b32 {T0}, {T0}, 8\ns_add_u32 {T0}, {T0}, {sRT}\ns_lshl_b32 {T0}, {T0}, 11")
        if isv:
            e(f"""v_and_b32 v52, 0xffff0000, v22
v_sub_f32 v53, v22, v52
v_and_b32 v54, 0xffff0000, v53
v_sub_f32 v55, v53, v54
v_cvt_pk_bf16_f32 v52, v52, v54
v_cvt_pk_bf16_f32 v53, v55, 0
v_cndmask_b32 v52, v52, 0, {sHI}
v_cndmask_b32 v53, v53, 0, {sHI}
v_mov_b32 v54, 0
v_mov_b32 v55, 0
v_mov_b32 v56, {sONES}
v_mov_b32 v57, {sONES}
v_mov_b32 v58, 0
v_mov_b32 v59, 0
v_mfma_f32_32x32x16_bf16 v[96:111], v[52:55], v[56:59], 0
v_bfe_u32 v60, v0, 4, 1
v_lshlrev_b32 v60, 17, v60
v_lshrrev_b32 v61, 5, v0
v_lshl_add_u32 v60, v61, 8, v60
v_and_b32 v61, 15, v0
v_lshl_add_u32 v60, v61, 4, v60""")
        else:
            e("""v_and_b32 v60, 0x33, v0
v_bfe_u32 v61, v0, 2, 1
v_lshl_or_b32 v60, v61, 3, v60
v_bfe_u32 v61, v0, 3, 1
v_lshl_or_b32 v60, v61, 2, v60
v_lshlrev_b32 v60, 4, v60
v_mov_b32 v23, v22""")
        for t in range(2):
            for f in range(2):
                b = ACC + 16 * t + 8 * f
                for j in range(4):
                    sc = v(96 + 8 * f + 2 * j, 2) if isv else "v[22:23]"
                    e(f"v_pk_mul_f32 {v(b+2*j,2)}, {v(b+2*j,2)}, {sc}")
                d = 112 + 8 * t + 4 * f
                for j in range(4):
                    e(f"v_cvt_pk_bf16_f32 v{d+j}, v{b+2*j}, v{b+2*j+1}")
                if isv:
                    e(f"s_add_u32 {T1}, {T0}, {2*t*64*2048}")
                    e(f"buffer_store_dwordx4 {v(d,4)}, v60, {SWS}, {T1} offen offset:{1024+f*512} sc1", tag="kvst")
                else:
                    e(f"s_add_u32 {T1}, {T0}, {(2*t+f)*64*2048}")
                    e(f"buffer_store_dwordx4 {v(d,4)}, v60, {SWS}, {T1} offen sc1", tag="kvst")
        self.stamp()

    def cs_write(self, nt, base=0):
        e = self.e
        e(f"""v_and_b32 v60, 31, v0
v_lshlrev_b32 v60, 5, v60
v_add_u32 v61, {L_CS + base*1024}, v60
v_lshrrev_b32 v60, 5, v0
v_lshl_add_u32 v60, v60, 2, v61
s_lshl_b32 {T0}, {sW}, 3
v_add_u32 v60, {T0}, v60""")
        for t in range(nt):
            e(f"ds_write_b32 v60, v{24+t} offset:{t*1024}")

    def cs_read(self, nt, bias):
        e = self.e
        tmp = 128 if bias else 96
        for t in range(nt):
            e(f"ds_read_b128 {v(tmp+8*t,4)}, v61 offset:{t*1024}")
            e(f"ds_read_b128 {v(tmp+8*t+4,4)}, v61 offset:{t*1024+16}")
        e(f"s_mov_b32 {T1}, 0x07060706\ns_mov_b32 {T2}, 0x01000100")
        for t in range(nt):
            b = tmp + 8 * t
            e(f"""v_pk_add_f32 {v(b,2)}, {v(b,2)}, {v(b+2,2)}
v_pk_add_f32 {v(b+4,2)}, {v(b+4,2)}, {v(b+6,2)}
v_pk_add_f32 {v(b,2)}, {v(b,2)}, {v(b+4,2)}
v_add_f32 v{b}, v{b}, v{b+1}
v_and_b32 v{b+1}, 0xffff0000, v{b}
v_sub_f32 v{b+1}, v{b}, v{b+1}
v_perm_b32 v{b+2}, v{b}, v{b}, {T1}
v_cvt_pk_bf16_f32 v{b+3}, v{b+1}, v{b+1}""")
            if bias and t > 0:
                e(f"v_perm_b32 v{b+4}, v{28+t}, v{28+t}, {T2}")
                e(f"v_cndmask_b32 v{32+4*t}, v{b+2}, v{b+4}, {sHI}")
            else:
                e(f"v_cndmask_b32 v{32+4*t}, v{b+2}, 0, {sHI}")
            e(f"v_cndmask_b32 v{33+4*t}, v{b+3}, 0, {sHI}\nv_mov_b32 v{34+4*t}, 0\nv_mov_b32 v{35+4*t}, 0")

    def stats(self):
        e = self.e
        e(f"""v_mov_b32 v52, v20
v_mov_b32 v53, v21
v_permlane32_swap_b32 v20, v52
v_permlane32_swap_b32 v21, v53
v_add_f32 v20, v20, v52
v_add_f32 v21, v21, v53
v_mul_f32 v20, {hex(f2u(-1.0/512))}, v20
v_mul_f32 v21, {hex(f2u(1.0/512))}, v21
v_fma_f32 v21, -v20, v20, v21
v_max_f32 v21, 0, v21
v_add_f32 v21, {hex(f2u(1e-5))}, v21
v_rsq_f32 v22, v21
s_nop 0
v_mul_f32 v21, v21, v22
v_cndmask_b32 v52, v20, v21, {sHI}
v_and_b32 v53, 0xffff0000, v52
v_sub_f32 v54, v52, v53
v_cvt_pk_bf16_f32 v48, v53, v54
v_cndmask_b32 v49, v48, 0, {sHI}
v_mov_b32 v50, 0
v_mov_b32 v51, 0""")

    def s2_reads(self, n):
        i, s = n >> 2, n & 3
        wb = self.WB + 16 * (n & 1)
        return [f"ds_read_b64_tr_b16 {a(wb+4*t+2*u,2)}, v19 offset:{(i%4)*16384+s*4096+t*1024+u*256}"
                for t in range(4) for u in range(2)]

    def kv_load(self, kt):
        b = 12 * (kt % self.p["R"])
        k = [f"buffer_load_dwordx4 {a(b,4)}, v1, {SWS}, {sKV} offen sc1"]
        vv = [f"s_mov_b64 exec, {sMASK}",
              f"buffer_load_dwordx4 {a(b+4,4)}, v3, {SWS}, {sKV} offen offset:1024 sc1",
              f"buffer_load_dwordx4 {a(b+8,4)}, v3, {SWS}, {sKV} offen offset:1536 sc1",
              "s_mov_b64 exec, -1"]
        return k, vv

    def stage2(self):
        e = self.e; A = self.A; p = self.p
        ACC = 64
        LA = p["LA2"]
        e("v_mov_b32 v24, 0\nv_mov_b32 v25, 0\nv_mov_b32 v26, 0\nv_mov_b32 v27, 0")
        e(f"""v_lshrrev_b32 v3, 5, v0
v_lshlrev_b32 v3, 8, v3
v_and_b32 v4, 15, v0
v_lshl_add_u32 v3, v4, 4, v3
v_lshlrev_b32 v5, 4, v4
v_and_b32 v6, 31, v0
v_lshlrev_b32 v6, {int(math.log2(FS))}, v6""")
        goload = f"buffer_load_dword v7, v5, {SDBG}, 0 offen sc1"
        kvpoll = f"buffer_load_dword v8, v6, {SWS}, {T3} offen sc1"
        A.wait_vm_tag(("c", 8)); e("s_barrier")
        for l in self.s2_reads(0):
            e(l)
        issued = 9
        pend = []
        while issued < 8 + LA:
            issued += 1
            pend += self.next_dma(issued)
        for n in range(32):
            i, s = n >> 2, n & 3
            step = 8 + i
            rd = []
            if n + 1 < 32:
                if s == 3:
                    while pend:
                        self.emit_side(pend.pop(0))
                    if LA >= 3:
                        A.wait_lg0()
                    if step + 1 == p["FLAG_STEP"]:
                        A.wait_vm_tag("kvst")
                    A.wait_vm_tag(("c", step + 1)); e("s_barrier")
                    if step + 1 == p["FLAG_STEP"]:
                        e(f"s_cmp_lg_u32 {sW}, 0\ns_cbranch_scc1 L_noflag")
                        st = A.snapshot()
                        self.poll_check("go", "v7", goload)
                        e(f"""s_lshl_b32 {T0}, {sCG}, 4
s_add_u32 {T0}, {T0}, {sRB}
s_mul_i32 {T0}, {T0}, {FS}
s_add_u32 {T0}, {T0}, {WS_KVF}
v_mov_b32 v7, 1
v_mov_b32 v8, 0
s_mov_b64 exec, 1""")
                        A.restore(st)
                        e(f"buffer_store_dword v7, v8, {SWS}, {T0} offen sc1", certain=False)
                        e("s_mov_b64 exec, -1")
                        A.label("L_noflag")
                    issued += 1
                    pend = self.next_dma(issued)
                    if step + 1 == p["POLL_STEP"]:
                        pend += [f"s_and_b32 {T3}, {sCG}, 14", f"s_mul_i32 {T3}, {T3}, {16*FS}",
                                 f"s_add_u32 {T3}, {T3}, {WS_KVF}", kvpoll]
                rd = self.s2_reads(n + 1)
            if n == 0:
                def go_issue():
                    e(f"s_cmp_lg_u32 {sW}, 0\ns_cbranch_scc1 L_nogl")
                    e(goload, certain=False)
                    A.label("L_nogl")
                pend = [go_issue] + pend
            side = []
            if s == 0:
                rd = rd + [f"ds_read_b64_tr_b16 {v(self.CT+4*t+2*u,2)}, v28 offset:{(i%4)*16384+t*1024+u*256}"
                           for t in range(4) for u in range(2)]
            if s in (1, 2):
                for j in range(2 * (s - 1), 2 * s):
                    for t in range(4):
                        side.append(f"v_dot2_f32_bf16 v{24+t}, v{self.CT+4*t+j}, {sONES}, v{24+t}")
            wb = self.WB + 16 * (n & 1)
            per = (len(rd) + 3) // 4
            for t in range(4):
                c = "0" if n == 0 else v(ACC + 16 * t, 16)
                e(f"v_mfma_f32_32x32x16_bf16 {v(ACC+16*t,16)}, {a(wb+4*t,4)}, {v(self.XF+4*n,4)}, {c}")
                for l in rd[:per]:
                    e(l)
                rd = rd[per:]
                if s != 0 or n == 0:
                    for _ in range(1 if side else 2):
                        if pend:
                            self.emit_side(pend.pop(0))
                for l in side[:2]:
                    e(l)
                side = side[2:]
            if n == 30:
                self.cs_write(4, base=2)
        while pend:
            self.emit_side(pend.pop(0))
        self.stamp()
        self.poll_check("kv", "v8", kvpoll)
        e(f"""s_lshl_b32 {T0}, {sCG}, 1
s_and_b32 {T1}, {sW}, 1
s_add_u32 {T0}, {T0}, {T1}
s_lshl_b32 {T0}, {T0}, 17
s_lshr_b32 {T1}, {sW}, 1
s_lshl_b32 {T1}, {T1}, 16
s_add_u32 {sKV}, {T0}, {T1}
s_xor_b32 {T0}, {sKV}, 0x10000""")
        e(f"buffer_load_dwordx4 a[248:251], v1, {SWS}, {T0} offen sc1", tag=("kv", 0))
        for kt in range(p["R"] - 1):
            k, vv = self.kv_load(kt)
            for l in k + vv:
                e(l, tag=("kv", kt))
            e(f"s_add_u32 {sKV}, {sKV}, 2048")
        A.wait_lg0(); e("s_barrier")
        self.cs_read(4, bias=True)
        for t in range(4):
            e(f"v_mfma_f32_32x32x16_bf16 {v(ACC+16*t,16)}, {v(32+4*t,4)}, v[48:51], {v(ACC+16*t,16)}")
        e(f"v_mul_f32 v20, {hex(f2u(0.25*math.log2(math.e)))}, v22\nv_mul_f32 v22, v22, v22\nv_mov_b32 v21, v20\nv_mov_b32 v23, v22")
        e(f"s_lshl_b32 {T0}, {sW}, 10\ns_add_u32 {T0}, {T0}, {L_QX}\nv_add_u32 v60, {T0}, v1")
        for f in range(2):
            b = ACC + 8 * f
            for j in range(4):
                e(f"v_pk_mul_f32 {v(b+2*j,2)}, {v(b+2*j,2)}, v[20:21]")
            for j in range(4):
                e(f"v_cvt_pk_bf16_f32 v{160+4*f+j}, v{b+2*j}, v{b+2*j+1}")
            e(f"ds_write_b128 v60, {v(160+4*f,4)} offset:{f*4096}")
        for t in range(1, 4):
            for j in range(8):
                b = ACC + 16 * t + 2 * j
                e(f"""v_pk_mul_f32 v[168:169], {v(b,2)}, v[22:23]
v_mul_f32 v{b}, v168, |v{b}|
v_mul_f32 v{b+1}, v169, |v{b+1}|
v_cvt_pk_bf16_f32 v{b}, v{b}, v{b+1}
v_pk_max_i16 v{176+8*(t-1)+j}, v{b}, 0""")
            if t == 1:
                A.wait_lg0(); e("s_barrier")
                e(f"""s_and_b32 {T0}, {sW}, 1
s_lshl_b32 {T0}, {T0}, 12
s_and_b32 {T1}, {sW}, 2
s_lshl_b32 {T1}, {T1}, 10
s_add_u32 {T0}, {T0}, {L_QX}
s_add_u32 {T2}, {T0}, {T1}
s_xor_b32 {T1}, {T1}, 2048
s_add_u32 {T0}, {T0}, {T1}
v_add_u32 v60, {T2}, v1
v_add_u32 v61, {T0}, v1""")
                for j in range(4):
                    e(f"ds_read_b128 {v(200+4*j,4)}, v{60+(j>>1)} offset:{(j&1)*1024}")
        A.wait_lg0(); e("s_barrier")
        self.stamp()

    NEGM, O, S, HP, Q = 16, 80, 144, 176, 200

    def negm_fill(self, j, src):
        b = self.NEGM + 16 * j
        self.e(f"v_mov_b32 v{b+1}, v{b}" if src == b else f"v_mov_b32 v{b}, v{src}\nv_mov_b32 v{b+1}, v{src}")
        for k in range(1, 8):
            self.e(f"v_mov_b64 {v(b+2*k,2)}, {v(b,2)}")

    def probe(self):
        e = self.e
        for r in range(240, 244):
            e(f"v_mov_b32 v{r}, 0")
        e("v_mov_b32 v4, 0xdddddddd")
        for j in range(4):
            e(f"v_mfma_f32_32x32x16_bf16 {v(self.NEGM+16*j,16)}, a[0:3], {v(self.Q+4*j,4)}, 0")
            e(f"v_mfma_f32_32x32x16_bf16 {v(self.O+16*j,16)}, a[248:251], {v(self.Q+4*j,4)}, 0")
        for j in range(4):
            n, o = self.NEGM + 16 * j, self.O + 16 * j
            e(f"v_max_f32 v8, v{n}, v{o}\nv_max_f32 v9, v{n+1}, v{o+1}")
            for k in range(2, 16):
                e(f"v_max3_f32 v{8+(k&1)}, v{n+k}, v{o+k}, v{8+(k&1)}")
            e(f"v_mfma_f32_32x32x16_bf16 {v(o,16)}, v[240:243], v[240:243], 0")
            e("v_max_f32 v8, v8, v9\nv_mov_b32 v9, v8\nv_permlane32_swap_b32 v8, v9\nv_max_f32 v8, v8, v9")
            bias = self.p["BIAS"] if not self.p["FORCE_FB"] else -200.0
            e(f"v_sub_f32 v{n}, {hex(f2u(-bias))}, v8")
            self.negm_fill(j, n)
        self.stamp()

    def qk(self, t):
        kt, j = t >> 2, t & 3
        b = 12 * (kt % self.p["R"])
        return f"v_mfma_f32_32x32x16_bf16 {v(self.S+16*(t&1),16)}, {a(b,4)}, {v(self.Q+4*j,4)}, {v(self.NEGM+16*j,16)}"

    def pv(self, t, f):
        kt, j = t >> 2, t & 3
        b = 12 * (kt % self.p["R"])
        return f"v_smfmac_f32_32x32x32_bf16 {v(self.O+16*j,16)}, {a(b+4+4*f,4)}, {v(self.S+16*(t&1)+8*f,8)}, v4"

    def wdma(self, i):
        srd = SW2 if i < 22 else SWO
        ii = i if i < 22 else i - 22
        return [f"s_add_u32 m0, {sLDSW}, {(i%20)*2048}",
                f"s_add_u32 {sB}, {sA}, {ii*4*16384}",
                f"buffer_load_dwordx4 v5, {srd}, {sB} offen lds",
                f"buffer_load_dwordx4 v6, {srd}, {sB} offen offset:1024 lds"]

    def attention(self):
        e = self.e; A = self.A; p = self.p; R = p["R"]
        side = defaultdict(list)

        def put(t, k, x, tag=None, certain=True):
            side[(t, k)].append((x, tag, certain))
        e(f"""v_lshrrev_b32 v8, 3, v0
v_and_b32 v9, 7, v0
v_bfe_u32 v10, v0, 4, 1
v_lshlrev_b32 v11, 2, v10
v_xor_b32 v9, v9, v11
v_lshlrev_b32 v9, 4, v9
v_lshl_add_u32 v5, v8, 10, v9
v_add_u32 v6, 7168, v5
s_lshl_b32 {sA}, {sW}, 14
s_lshl_b32 {T0}, {sCT64}, 7
s_add_u32 {sA}, {sA}, {T0}
s_and_b32 {T0}, {sW}, 2
s_lshl_b32 {T0}, {T0}, 9
v_add_u32 v12, {T0}, v1
v_xor_b32 v13, 1024, v12
v_mov_b32 v232, -1
v_mov_b32 v233, -1
v_mov_b32 v234, -1
v_mov_b32 v235, -1
v_and_b32 v14, 31, v0
v_lshlrev_b32 v7, {int(math.log2(FS))}, v14
s_lshl_b32 {sC}, {sFT0}, 7
s_add_u32 {sC}, {sC}, {sRT}
s_lshl_b32 {sC}, {sC}, 10""")
        e(f"""s_lshl_b32 {T0}, {sRT64}, 1
s_lshr_b32 {T1}, {sW}, 1
s_add_u32 {T0}, {T0}, {T1}
s_lshl_b32 {T0}, {T0}, 15
s_lshl_b32 {T1}, {sCT64}, 1
s_and_b32 {T2}, {sW}, 1
s_add_u32 {T1}, {T1}, {T2}
s_lshl_b32 {sF}, {T1}, 6
s_add_u32 {sE}, {T0}, {sF}
v_lshrrev_b32 v15, 5, v0
v_lshlrev_b32 v15, 3, v15
v_lshl_add_u32 v14, v14, 10, v15""")
        for kt in range(32):
            t0 = 4 * kt
            if kt + R - 1 < 32:
                k, vv = self.kv_load(kt + R - 1)
                for l in k:
                    put(t0, 0, l, ("kv", kt + R - 1))
                for l in vv:
                    put(t0, 1, l, ("kv", kt + R - 1))
                put(t0, 2, f"s_add_u32 {sKV}, {sKV}, 2048")
            if kt + 1 < 32:
                put(t0 + 3, 0, (lambda k=kt: A.wait_vm_tag(("kv", k + 1))))
        for i in range(6):
            st = f"buffer_store_dwordx4 {v(self.HP+4*i,4)}, v1, {SH}, {sC} offen sc1"
            if i < 4:
                put(4 * i + 1, 0, st, "pub")
            else:
                def cond(st=st, i=i):
                    e(f"s_cbranch_scc1 L_noh{i}")
                    e(st, tag="pub", certain=False)
                    A.label(f"L_noh{i}")
                put(4 * i, 2, f"s_cmp_ge_u32 {sCG}, 11")
                put(4 * i + 1, 0, cond)
            put(4 * i + 1, 1, f"s_add_u32 {sC}, {sC}, 65536")
        put(4 * 6 + 1, 0, f"s_lshl_b32 {sC}, {sCG}, 7")
        put(4 * 6 + 1, 1, f"s_add_u32 {sC}, {sC}, {sRT}")
        put(4 * 6 + 1, 2, f"s_lshl_b32 {sC}, {sC}, 10")
        put(4 * 6 + 3, 1, f"s_add_u32 {sC}, {sC}, {WS_O}")
        put(4 * 6 + 3, 2, f"buffer_store_dwordx4 v[232:235], v1, {SWS}, {sC} offen sc1", "pub")
        put(4 * 7 + 1, 0, f"s_add_u32 {sC}, {sC}, 65536")
        put(4 * 7 + 1, 1, f"buffer_store_dwordx4 v[232:235], v1, {SWS}, {sC} offen sc1", "pub")
        put(4 * 8 + 1, 0, f"s_lshl_b32 {sC}, {sRT}, 4")
        put(4 * 8 + 1, 1, f"s_add_u32 {sC}, {sC}, {sCG}")
        put(4 * 8 + 1, 2, f"s_mul_i32 {sC}, {sC}, {FS}")
        put(4 * 9 + 1, 0, f"s_add_u32 {sC}, {sC}, {WS_HF}")
        put(4 * 9 + 1, 1, "v_mov_b32 v232, 1")
        put(4 * 10 + 1, 0, lambda: A.wait_vm_tag("pub"))
        put(4 * 10 + 1, 1, "s_mov_b64 exec, 1")
        put(4 * 10 + 1, 1, f"buffer_store_dword v232, v240, {SWS}, {sC} offen sc1")
        put(4 * 10 + 1, 1, "s_mov_b64 exec, -1")
        for i in range(17):
            w = self.wdma(i)
            t = 4 * (2 + i) + 2
            put(t, 0, w[0]); put(t, 1, w[1]); put(t, 2, w[2], "w"); put(t, 2, w[3], "w")
        for g in range(4):
            put(4 * (11 + g) + 1, 0, f"buffer_load_dwordx2 {v(216+2*g,2)}, v14, {SX}, {sE} offen offset:{16*g}")
            put(4 * (11 + g) + 1, 1, f"buffer_load_dwordx2 {v(224+2*g,2)}, v15, {SB2}, {sF} offen offset:{16*g}")
        hpoll = f"buffer_load_dword v8, v7, {SWS}, {sC} offen sc1"
        put(4 * 17 + 1, 0, f"s_mul_i32 {sC}, {sRT64}, {32*FS}")
        put(4 * 17 + 1, 1, f"s_add_u32 {sC}, {sC}, {WS_HF}")
        put(4 * 18 + 1, 0, hpoll, "hp")
        put(4 * 19 + 1, 0, f"s_lshl_b32 {sD}, {sW}, 5")
        put(4 * 19 + 1, 1, f"s_add_u32 {sD}, {sD}, {sRT64}")
        put(4 * 19 + 1, 2, f"s_lshl_b32 {sD}, {sD}, 11")
        put(4 * 19 + 3, 1, lambda: A.wait_vm_tag("hp"))
        put(4 * 19 + 3, 2, lambda: self.poll_check("h", "v8", hpoll))
        for i in range(22):
            t = 4 * (20 + (i >> 1)) + 1 + (i & 1)
            put(t, 0, f"buffer_load_dwordx4 {a(72+8*i,4)}, v12, {SH}, {sD} offen sc1", "h")
            put(t, 1, f"buffer_load_dwordx4 {a(76+8*i,4)}, v13, {SH}, {sD} offen sc1", "h")
            put(t, 2, f"s_add_u32 {sD}, {sD}, {4*65536}")

        def flush(t, k):
            for x, tag, certain in side.pop((t, k), []):
                if callable(x):
                    x()
                else:
                    e(x, tag=tag, certain=certain)
        e(self.qk(0))
        for t in range(128):
            sb = self.S + 16 * (t & 1)
            for i in range(16):
                if i == 2:
                    if t > 0:
                        e(self.pv(t - 1, 1))
                    flush(t, 0)
                if i == 5:
                    if t + 1 < 128:
                        e(self.qk(t + 1))
                    flush(t, 1)
                if i == 10:
                    e(self.pv(t, 0))
                    flush(t, 2)
                e(f"v_exp_f32 v{sb+i}, v{sb+i}")
        e(self.pv(127, 1))
        assert not side, side.keys()
        self.stamp()

    def tail(self):
        e = self.e; A = self.A; p = self.p
        O = self.O
        XO = 17 * 2048
        e(f"""s_xor_b32 {T0}, {sW}, 2
s_mul_i32 {T0}, {T0}, 40960
s_add_u32 {T0}, {T0}, {XO}
v_add_u32 v8, {T0}, v1
v_lshlrev_b32 v9, 2, v0
v_add_u32 v10, {T0}, v9
s_add_u32 {T0}, {sLDSW}, {XO}
v_add_u32 v11, {T0}, v1
v_add_u32 v9, {T0}, v9""")
        for j in range(2):
            b = O + 16 * (2 + j)
            e(f"ds_write_b128 v8, {v(b,4)} offset:{j*2048}\nds_write_b128 v8, {v(b+4,4)} offset:{j*2048+1024}")
            e(f"ds_write_b32 v10, v{b+8} offset:{4096+j*256}")
        e(f"""s_lshl_b32 {T0}, {sCG}, 1
s_and_b32 {T1}, {sW}, 1
s_add_u32 {T0}, {T0}, {T1}
s_lshl_b32 {T0}, {T0}, 6
s_and_b32 {T1}, {sRT}, 0xfe
s_add_u32 {T0}, {T0}, {T1}
s_lshl_b32 {T0}, {T0}, 10
s_add_u32 {sC}, {T0}, {WS_O}""")
        A.wait_lg0(); e("s_barrier")
        for j in range(2):
            b = O + 16 * (2 + j)
            e(f"ds_read_b128 {v(b,4)}, v11 offset:{j*2048}\nds_read_b128 {v(b+4,4)}, v11 offset:{j*2048+1024}")
            e(f"ds_read_b32 v{b+8}, v9 offset:{4096+j*256}")
        for j in range(2):
            b = O + 16 * j
            e(f"v_add_f32 v{b+8}, v{b+8}, v{b+40}")
            for k in range(4):
                e(f"v_pk_add_f32 {v(b+2*k,2)}, {v(b+2*k,2)}, {v(b+32+2*k,2)}")
        A.label("L_norm")
        for j in range(2):
            b = O + 16 * j
            e(f"v_rcp_f32 v{b+10}, v{b+8}")
        e(f"v_max_f32 v9, v{O+8}, v{O+24}\nv_mul_f32 v9, 4.0, v9\nv_mul_f32 v8, 0, v9")
        for j in range(2):
            b = O + 16 * j
            e(f"v_mov_b32 v{b+11}, v{b+10}")
            for k in range(4):
                e(f"v_pk_mul_f32 {v(b+2*k,2)}, {v(b+2*k,2)}, {v(b+10,2)}")
            for k in range(4):
                e(f"v_cvt_pk_bf16_f32 v{b+12+k}, v{b+2*k}, v{b+2*k+1}")
        for j in range(2):
            for k in range(4):
                e(f"v_dot2_f32_bf16 v8, v{O+16*j+12+k}, v240, v8")
        e("v_cmp_u_f32 vcc, v8, v8")
        e("s_cbranch_vccnz L_fallback")
        A.label("L_ostore")
        for j in range(2):
            e(f"buffer_store_dwordx4 {v(O+16*j+12,4)}, v1, {SWS}, {sC} offen offset:{j*1024} sc1", tag="ost")
        self.fallback()
        self.stamp()
        ACC = 16; WF = 144; OF = 80
        e(f"""v_lshrrev_b32 v8, 5, v0
v_bfe_u32 v9, v0, 2, 2
v_lshl_add_u32 v8, v8, 2, v9
v_lshlrev_b32 v8, 7, v8
v_bfe_u32 v9, v0, 4, 1
v_lshl_add_u32 v8, v9, 5, v8
v_and_b32 v9, 3, v0
v_lshl_add_u32 v8, v9, 3, v8
v_bfe_u32 v9, v0, 3, 1
s_and_b32 {T0}, {sW}, 1
v_xor_b32 v9, {T0}, v9
v_lshl_add_u32 v8, v9, 6, v8
v_add_u32 v10, {sLDSW}, v8
v_xor_b32 v11, 64, v10
s_lshl_b32 {sD}, {sW}, 5
s_add_u32 {sD}, {sD}, {sRT64}
s_lshl_b32 {sD}, {sD}, 11
s_add_u32 {sD}, {sD}, {WS_O}""")

        def reads(i):
            wb = WF + 8 * (i & 3)
            return [f"ds_read_b64_tr_b16 {v(wb+4*t+2*u,2)}, v{10+t} offset:{(i%20)*2048+u*1024}" for t in range(2) for u in range(2)]

        def oloads():
            out = []
            for i in range(8):
                out.append(f"s_add_u32 {T3}, {sD}, {i*4*65536}")
                for r in range(2):
                    out.append(f"buffer_load_dwordx4 {v(OF+8*i+4*r,4)}, v{12+r}, {SWS}, {T3} offen sc1")
            return out
        A.wait_vm_tag("w")
        for l in reads(0) + reads(1):
            e(l)
        pend = []
        for i in (17, 18, 19):
            pend += [(l, ("w", i)) for l in self.wdma(i)]
        A.wait_vm_tag("h")
        for i in range(30):
            if i == 22:
                while pend:
                    x, tg = pend.pop(0); e(x, tag=tg)
                self.stamp()
                for g in range(4):
                    for k in range(2):
                        xr, br, d = 216 + 2 * g + k, 224 + 2 * g + k, ACC + 4 * g + 2 * k
                        e(f"""v_lshlrev_b32 v236, 16, v{xr}
v_and_b32 v237, 0xffff0000, v{xr}
v_lshlrev_b32 v238, 16, v{br}
v_and_b32 v239, 0xffff0000, v{br}
v_pk_add_f32 v[236:237], v[236:237], v[238:239]
v_pk_add_f32 {v(d,2)}, {v(d,2)}, v[236:237]""")
                e("s_barrier")
                e(f"s_mov_b32 {sCNT}, {SPIN}")
                A.label("L_ochk")
                A.wait_vm0()
                e(f"v_max_u32 v8, v{OF}, v{OF+1}\nv_max_u32 v9, v{OF+2}, v{OF+3}")
                for k in range(2, 32):
                    e(f"v_max3_u32 v{8+(k&1)}, v{OF+2*k}, v{OF+2*k+1}, v{8+(k&1)}")
                e("v_max_u32 v8, v8, v9\nv_cmp_eq_u32 vcc, -1, v8\ns_cbranch_vccnz L_oretry")
                A.label("L_ook")
                self.late.append("L_oretry:\n    " + "\n    ".join(
                    [f"s_sub_u32 {sCNT}, {sCNT}, 1", f"s_cmp_eq_u32 {sCNT}, 0", "s_cbranch_scc1 L_ook", "s_sleep 4"]
                    + oloads() + ["s_branch L_ochk"]))
                self.stamp()
            rd = []
            if i + 2 < 30:
                A.wait_vm_tag(("w", i + 2))
                rd = reads(i + 2)
            if 1 <= i <= 10:
                pend += [(l, ("w", 19 + i)) for l in self.wdma(19 + i)]
            if i == p["OLOAD_KS"]:
                pend += [(l, "o") for l in oloads()]
            wb = WF + 8 * (i & 3)
            for j in range(4):
                rl, tl = j >> 1, j & 1
                bop = a(72 + 8 * i + 4 * rl, 4) if i < 22 else v(OF + 8 * (i - 22) + 4 * rl, 4)
                c = "0" if i == 0 else v(ACC + 16 * j, 16)
                e(f"v_mfma_f32_32x32x16_bf16 {v(ACC+16*j,16)}, {v(wb+4*tl,4)}, {bop}, {c}")
                if rd:
                    e(rd.pop(0))
                for _ in range(2):
                    if pend:
                        x, tg = pend.pop(0); e(x, tag=tg)
        self.stamp()
        IN = 10 * 2048
        for j in range(1, 4):
            e(f"s_xor_b32 {T0}, {sW}, {j}\ns_mul_i32 {T0}, {T0}, 40960\ns_add_u32 {T0}, {T0}, {IN+(j-1)*4096}\nv_add_u32 v{7+j}, {T0}, v1")
        e(f"s_add_u32 {T0}, {sLDSW}, {IN}\nv_add_u32 v11, {T0}, v1")
        e("v_lshrrev_b32 v15, 5, v0\nv_lshl_add_u32 v14, v15, 3, v14")
        for j in range(1, 4):
            for k in range(4):
                e(f"ds_write_b128 v{7+j}, {v(ACC+16*j+4*k,4)} offset:{k*1024}")
        A.wait_lg0(); e("s_barrier")
        for k in range(4):
            for j in range(1, 4):
                e(f"ds_read_b128 {v(ACC+16*j+4*k,4)}, v11 offset:{(j-1)*4096+k*1024}")
        for h in range(2):
            for k in range(4 * h, 4 * h + 4):
                d = ACC + 2 * k
                e(f"""v_pk_add_f32 {v(d,2)}, {v(d,2)}, {v(d+16,2)}
v_pk_add_f32 {v(d+32,2)}, {v(d+32,2)}, {v(d+48,2)}
v_pk_add_f32 {v(d,2)}, {v(d,2)}, {v(d+32,2)}
v_cvt_pk_bf16_f32 v{80+k}, v{d}, v{d+1}""")
            b = 80 + 4 * h
            e(f"v_permlane32_swap_b32 v{b}, v{b+2}\nv_permlane32_swap_b32 v{b+1}, v{b+3}")
            e(f"buffer_store_dwordx4 {v(b,4)}, v14, {SOUT}, {sE} offen offset:{32*h}")
        if p["STAMP"]:
            self.stamp()
            A.wait_vm0()
            self.stamp()
            e(f"s_memrealtime {sTS}")
            A.wait_lg0()
            e(f"v_writelane_b32 v2, s98, 31")
            e(f"s_getreg_b32 {T0}, hwreg(HW_REG_XCC_ID)\nv_writelane_b32 v2, {T0}, 30")
            e(f"s_lshl_b32 {T0}, s2, 2\ns_add_u32 {T0}, {T0}, {sW}\ns_lshl_b32 {T0}, {T0}, 8\ns_add_u32 {T0}, {T0}, {WS_ST}\nv_lshlrev_b32 v8, 2, v0")
            e(f"buffer_store_dword v2, v8, {SWS}, {T0} offen")

    def fallback(self):
        F = Asm()
        e = F.e
        S, O, N, Q = self.S, self.O, self.NEGM, self.Q
        F.label("L_fallback")
        e(f"s_cmp_lg_u32 {sFBK}, 0\ns_cbranch_scc1 L_ostore\ns_mov_b32 {sFBK}, 1")
        e(f"s_lshl_b32 {T0}, {sCG}, 1\ns_and_b32 {T1}, {sW}, 1\ns_add_u32 {T0}, {T0}, {T1}\ns_lshl_b32 {T2}, {T0}, 17")
        e(f"s_mov_b32 {sKV}, {T2}\ns_mov_b32 {sCNT}, 64\nv_mov_b32 v8, 0xff800000\nv_mov_b32 v9, 0xff800000")
        F.label("L_fb1")
        e(f"buffer_load_dwordx4 a[0:3], v1, {SWS}, {sKV} offen sc1\ns_waitcnt vmcnt(0)")
        for j in range(2):
            e(f"v_mfma_f32_32x32x16_bf16 {v(S+16*j,16)}, a[0:3], {v(Q+4*j,4)}, 0")
        e("s_nop 15")
        for j in range(2):
            for k in range(8):
                e(f"v_max3_f32 v{8+j}, v{S+16*j+2*k}, v{S+16*j+2*k+1}, v{8+j}")
        e(f"s_add_u32 {sKV}, {sKV}, 2048\ns_sub_u32 {sCNT}, {sCNT}, 1\ns_cmp_lg_u32 {sCNT}, 0\ns_cbranch_scc1 L_fb1")
        for j in range(2):
            e(f"v_mov_b32 v10, v{8+j}\nv_permlane32_swap_b32 v{8+j}, v10\nv_max_f32 v{8+j}, v{8+j}, v10")
            for k in range(16):
                e(f"v_sub_f32 v{N+16*j+k}, 0, v{8+j}")
            for k in range(16):
                e(f"v_mov_b32 v{O+16*j+k}, 0")
        e(f"s_mov_b32 {sKV}, {T2}\ns_mov_b32 {sCNT}, 64")
        F.label("L_fb2")
        k, vv = self.kv_load(0)
        for l in k + vv:
            e(l)
        e("s_waitcnt vmcnt(0)")
        for j in range(2):
            e(f"v_mfma_f32_32x32x16_bf16 {v(S+16*j,16)}, a[0:3], {v(Q+4*j,4)}, {v(N+16*j,16)}")
        e("s_nop 15")
        for r in range(32):
            e(f"v_exp_f32 v{S+r}, v{S+r}")
        e("s_nop 1")
        for j in range(2):
            for f in range(2):
                e(f"v_smfmac_f32_32x32x32_bf16 {v(O+16*j,16)}, {a(4+4*f,4)}, {v(S+16*j+8*f,8)}, v4")
        e("s_nop 15")
        e(f"s_add_u32 {sKV}, {sKV}, 2048\ns_sub_u32 {sCNT}, {sCNT}, 1\ns_cmp_lg_u32 {sCNT}, 0\ns_cbranch_scc1 L_fb2")
        e("s_nop 15\ns_branch L_norm")
        self.late.append(F.text())

    def build(self):
        A = self.A
        self.prologue()
        self.e(f"s_bitcmp1_b32 {sCG}, 0\ns_cbranch_scc1 L_kvV")
        st = A.snapshot(); ns = self.nstamp
        self.kv_stage(False)
        self.e("s_branch L_kvdone")
        st1 = A.snapshot()
        A.restore(st); self.nstamp = ns
        A.label("L_kvV")
        self.kv_stage(True)
        assert [(x["tag"], x["certain"]) for x in A.vm] == [(x["tag"], x["certain"]) for x in st1[0]]
        assert len(A.lg) == len(st1[1])
        A.label("L_kvdone")
        self.e("s_nop 1")
        self.stage2()
        self.probe()
        self.attention()
        self.tail()
        A.label("L_end")
        self.e("s_endpgm")
        ref = open(f"cdna_kernels/{NAME}.s.ref").read().split("\n")
        hdr = [l for l in ref if l.startswith(";") and "@launch" not in l and "Override launch" not in l and "Harness parses" not in l]
        out = hdr + [f"; @launch grid=(256,1,1) block=(256,1,1) lds={LDS_BYTES}",
                     '.amdgcn_target "amdgcn-amd-amdhsa--gfx950"', ".text", f".globl {NAME}_kernel", ".p2align 8",
                     f".type {NAME}_kernel,@function", f"{NAME}_kernel:", A.text()] + self.late
        out += ["L_codelast:", "    s_endpgm", f".fill (1024-((L_codelast+4-{NAME}_kernel)%1024))/4, 4, 0xbf810000", "L_codeend:", "    s_endpgm"]
        out += ['.section .rodata,"a"', ".p2align 6", f".amdhsa_kernel {NAME}_kernel",
                "  .amdhsa_next_free_vgpr 512", "  .amdhsa_next_free_sgpr 102", "  .amdhsa_accum_offset 256",
                "  .amdhsa_group_segment_fixed_size 0", "  .amdhsa_kernarg_size 88", "  .amdhsa_user_sgpr_count 2",
                "  .amdhsa_user_sgpr_kernarg_segment_ptr 1", "  .amdhsa_system_sgpr_workgroup_id_x 1",
                ".end_amdhsa_kernel", ""]
        return "\n".join(out)


if __name__ == "__main__":
    kw = {}
    outp = f"cdna_kernels/{NAME}.s"
    for x in sys.argv[1:]:
        k, val = x.split("=")
        if k == "out":
            outp = val
        else:
            kw[k] = float(val) if "." in val else int(val)
    g = Gen(**kw)
    s = g.build()
    open(outp, "w").write(s)
    print("written", outp, "instrs", len(g.A.ins), "nops", g.A.nops_added, file=sys.stderr)
```

```python
import sys
HDR = """; @launch grid=({grid},1,1) block=({block},1,1) lds={lds}
; DIV {div}
.amdgcn_target "amdgcn-amd-amdhsa--gfx950"
.text
.globl mb_kernel
.p2align 8
.type mb_kernel,@function
mb_kernel:
    s_load_dwordx2 s[4:5], s[0:1], 0
    s_load_dwordx2 s[6:7], s[0:1], 8
    v_lshrrev_b32 v1, 6, v0
    s_nop 1
    v_readfirstlane_b32 s3, v1
    s_waitcnt lgkmcnt(0)
    s_mov_b32 s8, s4
    s_mov_b32 s9, s5
    s_mov_b32 s10, 0x4000000
    s_mov_b32 s11, 0x00020000
    s_mul_i32 s12, s2, {wpb}
    s_add_u32 s12, s12, s3
    s_lshl_b32 s12, s12, 4
{init}
    s_barrier
    s_memtime s[20:21]
    s_memrealtime s[24:25]
    s_waitcnt lgkmcnt(0)
    s_mov_b32 s14, {iters}
.p2align 6
L_loop:
{body}
    s_sub_u32 s14, s14, 1
    s_cmp_lg_u32 s14, 0
    s_cbranch_scc1 L_loop
    s_nop 15
    s_memtime s[22:23]
    s_memrealtime s[26:27]
    s_waitcnt lgkmcnt(0)
    s_sub_u32 s22, s22, s20
    s_sub_u32 s26, s26, s24
    v_mov_b32 v2, s22
    v_mov_b32 v3, s26
    v_mov_b32 v4, s12
    v_cmp_eq_u32 vcc, 0, v0
    v_and_b32 v5, 63, v0
    v_cmp_eq_u32 vcc, 0, v5
    s_and_saveexec_b64 s[16:17], vcc
    buffer_store_dwordx2 v[2:3], v4, s[8:11], 0 offen
    s_waitcnt vmcnt(0)
    s_endpgm
.section .rodata,"a"
.p2align 6
.amdhsa_kernel mb_kernel
  .amdhsa_next_free_vgpr {vgpr}
  .amdhsa_next_free_sgpr 64
  .amdhsa_accum_offset {acc}
  .amdhsa_group_segment_fixed_size 0
  .amdhsa_kernarg_size 16
  .amdhsa_user_sgpr_count 2
  .amdhsa_user_sgpr_kernarg_segment_ptr 1
  .amdhsa_system_sgpr_workgroup_id_x 1
.end_amdhsa_kernel
"""
def gen(name, body, units, wps, iters=2000, init="", vgpr=128, lds=0, grid=256):
    block = 256 * wps if wps <= 4 else 1024
    g = grid * (wps // 4 if wps > 4 else 1)
    initv = "\n".join(f"    v_mov_b32 v{i}, 0xbf000000" for i in range(8, vgpr)) + "\n" + init
    s = HDR.format(grid=g, block=block, lds=lds, div=iters * units * wps, wpb=block // 64, init=initv, iters=iters, body=body, vgpr=vgpr, acc=vgpr)
    open(f"{name}_w{wps}.s", "w").write(s)
    return f"{name}_w{wps}.s"

def rep(fmt, n, base=16, stride=1, mod=32):
    return "\n".join("    " + fmt.format(d=base + (i % mod) * stride, d1=base + (i % mod) * stride + 1, s=64 + (i % mod) * stride % 32, s1=64 + (i % mod) * stride % 32 + 1) for i in range(n))

if __name__ == "__main__":
    files = []
    for wps in (1, 2, 4):
        files.append(gen("exp", rep("v_exp_f32 v{d}, v{s}", 32), 32, wps))
        files.append(gen("fma", rep("v_fma_f32 v{d}, v{s}, v{s}, v{s}", 32), 32, wps))
        files.append(gen("add", rep("v_add_f32 v{d}, v{s}, v{s}", 32), 32, wps))
        files.append(gen("cvtpk", rep("v_cvt_pk_bf16_f32 v{d}, v{s}, v{s1}", 32), 32, wps))
        files.append(gen("perm", rep("v_perm_b32 v{d}, v{s}, v{s1}, v8", 32), 32, wps))
        files.append(gen("pkfma", rep("v_pk_fma_f32 v[{d}:{d1}], v[{s}:{s1}], v[{s}:{s1}], v[{s}:{s1}]", 32, stride=2, mod=16), 32, wps))
        files.append(gen("pkadd", rep("v_pk_add_f32 v[{d}:{d1}], v[{s}:{s1}], v[{s}:{s1}]", 32, stride=2, mod=16), 32, wps))
        files.append(gen("max3", rep("v_max3_f32 v{d}, v{s}, v{s1}, v{s}", 32), 32, wps))
        files.append(gen("exp16", rep("v_exp_f16 v{d}, v{s}", 32), 32, wps))
        body = []
        for i in range(16):
            body.append(f"    v_exp_f32 v{16+2*i}, v{64+(2*i)%32}")
            body.append(f"    v_exp_f32 v{17+2*i}, v{65+(2*i)%32}")
            body.append(f"    v_cvt_pk_bf16_f32 v{100+i}, v{16+(2*i+16)%32}, v{17+(2*i+16)%32}")
        files.append(gen("expcvt", "\n".join(body), 32, wps))
        body = []
        for i in range(16):
            body.append(f"    v_exp_f32 v{16+2*i}, v{64+(2*i)%32}")
            body.append(f"    v_add_f32 v{100+i}, v{16+(2*i+16)%32}, v{17+(2*i+16)%32}")
            body.append(f"    v_exp_f32 v{17+2*i}, v{65+(2*i)%32}")
            body.append(f"    v_add_f32 v{100+i}, v{16+(2*i+16)%32}, v{17+(2*i+16)%32}")
        files.append(gen("expadd11", "\n".join(body), 32, wps))
    print(" ".join(files))
```

```python
from gen1 import gen
files=[]
init="""    v_and_b32 v5, 63, v0
    v_lshlrev_b32 v6, 3, v5
    v_lshlrev_b32 v5, 4, v5
    s_mov_b32 s28, s6
    s_mov_b32 s29, s7
    s_mov_b32 s30, 0x1000000
    s_mov_b32 s31, 0x00020000
    s_lshl_b32 s32, s12, 10
    s_lshl_b32 s34, s3, 14
    s_lshr_b32 s35, s2, 3
    s_and_b32 s35, s35, 7
    s_lshl_b32 s35, s35, 17
    s_lshl_b32 s36, s3, 15
    s_add_u32 s35, s35, s36
""" + "\n".join(f"    s_add_u32 s33, s32, {i*1024}\n    buffer_load_dwordx4 v[{128+4*i}:{131+4*i}], v5, s[28:31], s33 offen\n    s_add_u32 m0, s34, {i*1024}\n    s_nop 0\n    buffer_load_dwordx4 v5, s[28:31], s33 offen lds" for i in range(16)) + "\n    s_waitcnt vmcnt(0)\n" + "\n".join(f"    v_mov_b32 v{i}, 0" for i in range(16,128)) + "\n    v_mov_b32 v7, 0xdddddddd\n"
def mk(name, ops, n, iters, extra=""):
    files.append(gen(name, "\n".join("    "+x for x in ops), n, 1, iters=iters, init=init+extra, vgpr=256, lds=65536))
mk("en_nop", ["s_nop 7"]*64, 64, 16)
mk("en_tr", sum([[f"ds_read_b64_tr_b16 v[{16+2*(i%16)}:{17+2*(i%16)}], v6 offset:{512*(i%128)}", "s_nop 2"] for i in range(128)],[]), 128, 16)
mk("en_b128", sum([[f"ds_read_b128 v[{16+4*(i%16)}:{19+4*(i%16)}], v5 offset:{1024*(i%64)}", "s_nop 6"] for i in range(64)],[]), 64, 16)
mk("en_dma", sum([[f"s_add_u32 s33, s35, {1024*(i%32)}", f"s_add_u32 m0, s34, {1024*(i%16)}", "s_nop 0", f"buffer_load_dwordx4 v5, s[28:31], s33 offen lds", "s_waitcnt vmcnt(8)"] for i in range(32)],[]), 32, 16)
mk("en_gl", sum([[f"s_add_u32 s33, s35, {1024*(i%32)}", f"buffer_load_dwordx4 v[{16+4*(i%16)}:{19+4*(i%16)}], v5, s[28:31], s33 offen", "s_waitcnt vmcnt(8)"] for i in range(32)],[]), 32, 16)
mk("en_dot", [f"v_dot2c_f32_bf16 v{16+i%4}, v{128+i%64}, v{128+i%64}" for i in range(512)], 512, 16)
mk("en_add", [f"v_add_f32 v{16+i%32}, v{128+i%64}, v{128+(i+7)%64}" for i in range(512)], 512, 16)
mk("en_cvt", [f"v_cvt_pk_bf16_f32 v{16+i%32}, v{128+i%64}, v{128+(i+7)%64}" for i in range(512)], 512, 16)
mk("en_exp", [f"v_exp_f32 v{16+i%32}, v{128+i%64}" for i in range(256)], 256, 16)
sc = "\n".join(f"    v_fma_f32 v{128+i}, v{128+i}, s40, v8" for i in range(64))
mk("en_expneg", [f"v_exp_f32 v{16+i%32}, v{128+i%64}" for i in range(256)], 256, 16, extra="    s_mov_b32 s40, 0x41f00000\n    v_mov_b32 v8, 0xc3200000\n"+sc+"\n")
mk("en_m32", [f"v_mfma_f32_32x32x16_bf16 v[{16+16*(i%4)}:{31+16*(i%4)}], v[{128+4*(i%12)}:{131+4*(i%12)}], v[{176+4*((i//4)%4)}:{179+4*((i//4)%4)}], v[{16+16*(i%4)}:{31+16*(i%4)}]" for i in range(64)], 64, 16)
mk("en_m32half", sum([[f"v_mfma_f32_32x32x16_bf16 v[{16+16*(i%4)}:{31+16*(i%4)}], v[{128+4*(i%12)}:{131+4*(i%12)}], v[{176+4*((i//4)%4)}:{179+4*((i//4)%4)}], v[{16+16*(i%4)}:{31+16*(i%4)}]","s_nop 14"] for i in range(32)],[]), 32, 16)
mk("en_qk", [f"v_mfma_f32_32x32x16_bf16 v[{16+16*(i%2)}:{31+16*(i%2)}], v[{128+4*((i//4)%12)}:{131+4*((i//4)%12)}], v[{176+4*(i%4)}:{179+4*(i%4)}], v[{64+16*(i%4)}:{79+16*(i%4)}]" for i in range(64)], 64, 16)
mk("en_qk0", [f"v_mfma_f32_32x32x16_bf16 v[{16+16*(i%2)}:{31+16*(i%2)}], v[{128+4*((i//4)%12)}:{131+4*((i//4)%12)}], v[{176+4*(i%4)}:{179+4*(i%4)}], 0" for i in range(64)], 64, 16)
mk("en_smfz", [f"v_smfmac_f32_32x32x32_bf16 v[{16+16*((i//2)%4)}:{31+16*((i//2)%4)}], v[{128+4*(i%12)}:{131+4*(i%12)}], v[96:103], v7" for i in range(64)], 64, 16)
mk("en_smfr", [f"v_smfmac_f32_32x32x32_bf16 v[{16+16*((i//2)%4)}:{31+16*((i//2)%4)}], v[{128+4*(i%8)}:{131+4*(i%8)}], v[{160+8*(i%4)}:{167+8*(i%4)}], v7" for i in range(64)], 64, 16)
mk("en_mz", [f"v_mfma_f32_32x32x16_bf16 v[{16+16*(i%4)}:{31+16*(i%4)}], v[96:99], v[100:103], v[{16+16*(i%4)}:{31+16*(i%4)}]" for i in range(64)], 64, 16)
print(" ".join(files))
```

```python
from gen1 import gen
files=[]
M="v_mfma_f32_32x32x16_bf16 v[64:79], v[16:19], v[20:23], v[64:79]"
def V(n, kind="add"):
    if kind=="add": return [f"v_add_f32 v{32+i%16}, v24, v25" for i in range(n)]
    if kind=="pk": return [f"v_pk_add_f32 v[{32+2*(i%8)}:{33+2*(i%8)}], v[24:25], v[26:27]" for i in range(n)]
    if kind=="cvt": return [f"v_cvt_pk_bf16_f32 v{32+i%16}, v24, v25" for i in range(n)]
def nops(c):
    out=[]
    while c>0:
        k=min(c,16); out.append(f"s_nop {k-1}"); c-=k
    return out
cases={}
for kind in ("add","pk"):
    for idle in (0,2,4,6,8,12,16,32,64):
        cases[f"idle{idle}_{kind}"]=nops(idle)+V(40,kind)
for kind in ("add","pk"):
    cases[f"m4nop12_{kind}"]=[M]*4+nops(12)+V(40,kind)
    cases[f"m4vnop12_{kind}"]=[M]*4+["v_nop"]*12+V(40,kind)
    cases[f"m4mov12_{kind}"]=[M]*4+["v_mov_b32 v50, v51"]*12+V(40,kind)
    cases[f"m4_{kind}"]=[M]*4+V(40,kind)
    cases[f"m4f_mov12_{kind}"]=sum([[M]+V(3) for _ in range(4)],[])+["v_mov_b32 v50, v51"]*9+V(40,kind)
for n,l in cases.items():
    files.append(gen("w_"+n, "\n".join("    "+x for x in l*16), 16, 1, iters=30))
print(" ".join(files))
```

```python
from gen1 import gen
files=[]
IT=60
init="""    v_mov_b32 v112, 0xdddddddd
    v_and_b32 v113, 63, v0
    v_lshlrev_b32 v113, 4, v113
    s_mov_b32 s28, s6
    s_mov_b32 s29, s7
    s_mov_b32 s30, 0x1000000
    s_mov_b32 s31, 0x00020000
    s_lshl_b32 s32, s3, 12
    s_mov_b32 m0, s32
    s_mov_b32 s40, s6
    s_or_b32 s41, s7, 0x100000
    s_mov_b32 s42, 0x100000
    s_mov_b32 s43, 0x00820000
    s_lshl_b32 s44, s12, 8
    s_add_u32 s44, s44, 0x200000
    v_add_u32 v120, s44, v113
    v_add_u32 v121, s32, v113
    v_lshrrev_b32 v122, 1, v113
    v_add_u32 v122, s32, v122
    s_mov_b32 s34, 0xffff
    s_mov_b32 s35, 0xffff
"""
def tile(t, ins):
    S=16+16*(t&1); So=16+16*((t+1)&1)
    out=[]
    for i in range(16):
        if i==2: out.append(f"v_smfmac_f32_32x32x32_bf16 v[64:79], v[88:91], v[{So+8}:{So+15}], v112"); out+=ins.get((t,0),[])
        if i==5: out.append(f"v_mfma_f32_32x32x16_bf16 v[{So}:{So+15}], v[80:83], v[92:95], v[96:111]"); out+=ins.get((t,1),[])
        if i==10: out.append(f"v_smfmac_f32_32x32x32_bf16 v[64:79], v[84:87], v[{S}:{S+7}], v112"); out+=ins.get((t,2),[])
        out.append(f"v_exp_f32 v{S+i}, v{S+i}")
    return out
gl=lambda i: f"buffer_load_dwordx4 v[{128+4*(i%4)}:{131+4*(i%4)}], v113, s[28:31], s32 offen offset:{1024*(i%4)} sc1"
dma=lambda i: f"buffer_load_dwordx4 v113, s[28:31], s32 offen offset:{1024*(i%4)} lds"
EX="s_mov_b64 exec, s[34:35]"; EA="s_mov_b64 exec, -1"
def rep(d):
    o={}
    for k in range(4):
        for (t,s),v in d.items(): o[(t+4*k,s)]=v
    return o
gt=lambda i: f"buffer_load_dwordx4 v[{128+4*(i%4)}:{131+4*(i%4)}], off, s[40:43], s32 offset:{1024*(i%4)}"
gp=lambda i: f"buffer_load_dwordx4 v[{128+4*(i%4)}:{131+4*(i%4)}], v113, s[28:31], s32 offen offset:{1024*(i%4)}"
gg=lambda i: f"global_load_dwordx4 v[{128+4*(i%4)}:{131+4*(i%4)}], v113, s[6:7] offset:{1024*(i%4)}"
g1=lambda i: f"buffer_load_dword v{128+4*(i%4)}, v113, s[28:31], s32 offen offset:{1024*(i%4)}"
gs=lambda i: gg(i)+" sc1"
gd=lambda i: f"global_load_lds_dwordx4 v113, s[6:7] offset:{1024*(i%4)}"
ga=lambda i: f"global_load_dwordx4 a[{4*(i%4)}:{3+4*(i%4)}], v113, s[6:7] offset:{1024*(i%4)}"
bs=lambda i: f"buffer_store_dwordx4 v[116:119], v113, s[8:11], s44 offen offset:{1024*(i%4)} sc1"
gst=lambda i: f"global_store_dwordx4 v120, v[116:119], s[4:5] offset:{1024*(i%4)} sc1"
dw=lambda i: f"ds_write_b128 v121, v[116:119] offset:{1024*(i%4)}"
dw2=lambda i: f"ds_write_b64 v122, v[116:117] offset:{512*(i%8)}"
tr=lambda i: f"ds_read_b64_tr_b16 v[{128+2*(i%8)}:{129+2*(i%8)}], v122 offset:{512*(i%8)}"
G3=[gg(0),gg(1),gg(2)]
cases={"G3":{(0,0):G3},
 "G3_bs":{(0,0):G3,(2,0):[bs(0)]}, "G3_gs":{(0,0):G3,(2,0):[gst(0)]}, "G3gs":{(0,0):G3+[gst(0)]}, "gsG3":{(0,0):[gst(0)]+G3},
 "G3_gs2":{(0,0):G3,(2,0):[gst(0),gst(1)]}, "G3_gsq":{(0,0):G3,(2,1):[gst(0)]},
 "G5":{(0,0):G3+[gd(0),gd(1)]}, "G3_2":{(0,0):G3,(2,0):[gd(0),gd(1)]}, "G6":{(0,0):G3+G3}, "G7":{(0,0):G3+G3+[gg(3)]},
 "G3_dw":{(0,0):G3,(2,0):[dw(0)]}, "G3_dwdw":{(0,0):G3,(2,0):[dw(0),dw(1)]}, "G3_dw_dw":{(0,0):G3,(2,0):[dw(0)],(2,2):[dw(1)]},
 "G3_d64x2":{(0,0):G3,(2,0):[dw2(0),dw2(1)]}, "G3_d64s":{(0,0):G3,(2,0):[dw2(0)],(2,1):[dw2(1)]},
 "G3_tr2":{(0,0):G3,(2,0):[tr(0),tr(1)]}, "G3_tr4":{(0,0):G3,(2,0):[tr(0),tr(1),tr(2),tr(3)]}, "G3_tr4q":{(0,0):G3,(2,1):[tr(0),tr(1),tr(2),tr(3)]},
 "G3_v2":{(0,0):G3,(2,0):["v_add_u32 v123, 0x2000, v123","v_add_u32 v124, v123, v124"]},
}
for n,d in cases.items():
    ins=rep(d)
    body=[]
    for t in range(16): body+=tile(t,ins)
    body.append("s_waitcnt vmcnt(20)")
    files.append(gen("av_"+n, "\n".join("    "+x for x in body), 4, 1, iters=IT, init=init, vgpr=160, lds=32768))
    t=open(files[-1]).read().replace(".amdhsa_next_free_vgpr 160",".amdhsa_next_free_vgpr 192"); open(files[-1],"w").write(t)
print(" ".join(files))
```

```python
from gen1 import gen
files=[]
M="v_mfma_f32_32x32x16_bf16 v[16:31], v[112:115], v[116:119], v[16:31]"
pka=[f"v_pk_add_f32 v[{16+2*k}:{17+2*k}], v[{16+2*k}:{17+2*k}], v[{32+2*k}:{33+2*k}]" for k in range(8)]
pkf=[f"v_pk_fma_f32 v[{16+2*k}:{17+2*k}], v[{16+2*k}:{17+2*k}], v[8:9], v[{48+2*k}:{49+2*k}] op_sel_hi:[1,0,1]" for k in range(8)]
fma=[f"v_fmac_f32 v{48+k}, v8, v{16+k}" for k in range(16)]
cvt=[f"v_cvt_pk_bf16_f32 v{80+k}, v{16+2*k}, v{17+2*k}" for k in range(8)]
def st(a,b,d,perm):
    lo=[i for i in range(8) if not i&d]; dpp=f"quad_perm:{perm} row_mask:0xf bank_mask:0xf"
    return ["s_mov_b64 vcc, s[40:41]"]+[f"v_cndmask_b32_dpp v{b+i}, v{a+i+d}, v{a+i}, vcc {dpp}" for i in lo]+["s_not_b64 vcc, vcc"]+[f"v_cndmask_b32_dpp v{b+i+d}, v{a+i}, v{a+i+d}, vcc {dpp}" for i in lo]
sw=[f"v_permlane32_swap_b32 v{88+i}, v{90+i}" for i in (0,1,4,5)]
sh=st(80,88,2,"[1,0,3,2]")+sw+st(88,80,4,"[2,3,0,1]")
N=["s_nop 11","s_nop 0"]
MV=["v_mov_b32 v100, v101"]*12
A=lambda n:[f"v_add_f32 v{64+i%8}, v8, v9" for i in range(n)]
unit=[M]*6+N+pka+pkf+cvt+sh
def delay(k):
    out=[]
    while k>0:
        c=min(k,16); out.append(f"s_nop {c-1}"); k-=c
    if len(out)%2==0: out.append("s_nop 0")
    return out
for nm,d in {"0000":(0,0,0,0),"0123":(0,1,2,3),"0246":(0,2,4,6),"0369":(0,3,6,9),"048c":(0,4,8,12),"0101":(0,1,0,1),"0011":(0,0,1,1),"0202":(0,2,0,2),"0022":(0,0,2,2),"0404":(0,4,0,4),"0044":(0,0,4,4),"0808":(0,8,0,8),"0088":(0,0,8,8),"0008":(0,0,0,8),"x6":(0,6,12,18),"x8":(0,8,16,24)}.items():
    body=[]
    for w in range(4):
        if w<3: body += [f"s_cmp_lg_u32 s3, {w}", f"s_cbranch_scc1 L_w{w+1}"]
        for r in range(4): body += ["s_barrier"]+delay(d[w]+1)+unit
        body += ["s_branch L_e", ".p2align 6", f"L_w{w+1}:"]
    body += ["L_e:"]
    files.append(gen("y_"+nm, "\n".join(("    "+x if not x.endswith(":") else x) for x in body), 4, 1, iters=40, init="    s_mov_b64 s[40:41], -1\n"))
print(" ".join(files))
```
